```python
import torch

def _softmax(x, axis=-1):
    return torch.softmax(x, dim=axis)
def _gelu(x):
    return torch.nn.functional.gelu(x, approximate="tanh")
def _silu(x):
    return torch.nn.functional.silu(x)
def _sigmoid(x):
    return torch.sigmoid(x)
def _layernorm(x, axis=-1, eps=1e-5):
    m = x.mean(dim=axis, keepdim=True)
    v = x.var(dim=axis, keepdim=True, unbiased=False)
    return (x - m) / torch.sqrt(v + eps)
def _scatter_add(tgt, idx, src, axis=0):
    return tgt.clone().index_add_(axis, idx, src)
def _segment_sum(src, seg, n):
    out = torch.zeros((n,) + src.shape[1:], dtype=src.dtype)
    return out.index_add_(0, seg, src)
def _pad(x, pw):
    flat = tuple(v for pair in reversed(pw) for v in pair)
    return torch.nn.functional.pad(x, flat)

kernel_name = 'interleave_layers__sliding_block_cached__geglu_ffn__decode'

def setup_inputs():

    _w = (lambda a: (lambda t: t.to(torch.bfloat16) if t.is_floating_point() else t)(torch.as_tensor(a)))
    def _A_setup():
        B, Sq, D = 4, 1, 512
        Hq, Hkv, Sk, Dh = 32, 32, 4096, 128
        assert Hq % Hkv == 0, (Hq, Hkv)
        return {
            "x": _w((lambda *s: torch.randn(*s, dtype=torch.bfloat16) * 0.05)(B, Sq, D)),
            "k_cache": _w((lambda *s: torch.randn(*s, dtype=torch.bfloat16) * 1.6)(B, Hkv, Sk, Dh)),
            "v_cache": _w((lambda *s: torch.randn(*s, dtype=torch.bfloat16) * 1.6)(B, Hkv, Sk, Dh)),
            "wq": _w((lambda *s: torch.randn(*s, dtype=torch.bfloat16) * 1.6)(D, Hq * Dh) * (D ** -0.5)),
            "wo": _w((lambda *s: torch.randn(*s, dtype=torch.bfloat16) * 1.6)(Hq * Dh, D) * ((Hq * Dh) ** -0.5)),
        }
    _A_in = _A_setup()

    def _B_setup():
        B, S, D, F = 4, 1, 512, 1376
        return {
            "x": _w((lambda *s: torch.randn(*s, dtype=torch.bfloat16) * 0.05)(B, S, D)),
            "w_gate": _w((lambda *s: torch.randn(*s, dtype=torch.bfloat16) * 0.05)(D, F)),
            "w_up": _w((lambda *s: torch.randn(*s, dtype=torch.bfloat16) * 0.05)(D, F)),
            "w_down": _w((lambda *s: torch.randn(*s, dtype=torch.bfloat16) * 0.05)(F, D)),
        }
    _B_in = _B_setup()

    return {
        "A_x": _A_in["x"],
        "A_k_cache": _A_in["k_cache"],
        "A_v_cache": _A_in["v_cache"],
        "A_wq": _A_in["wq"],
        "A_wo": _A_in["wo"],
        "B_x": _B_in["x"],
        "B_w_gate": _B_in["w_gate"],
        "B_w_up": _B_in["w_up"],
        "B_w_down": _B_in["w_down"],
    }

def reference(A_x, A_k_cache, A_v_cache, A_wq, A_wo, B_x, B_w_gate, B_w_up, B_w_down):
    def _A_ref(x, k_cache, v_cache, wq, wo):
        B, Sq, D = x.shape
        Hq, Dh = 32, 128
        Hkv, Sk = k_cache.shape[1], k_cache.shape[2]
        W = min(4096, max(256, Sk // 4))
        rep = Hq // Hkv
        q = (lambda x, *d: x.permute(*d))((x @ wq).reshape(B, Sq, Hq, Dh), 0, 2, 1, 3)
        k = (lambda x, n, axis: torch.repeat_interleave(x, n, dim=axis))(k_cache[:, :, Sk - W:, :], rep, axis=1)
        v = (lambda x, n, axis: torch.repeat_interleave(x, n, dim=axis))(v_cache[:, :, Sk - W:, :], rep, axis=1)
        scores = torch.einsum("bhqd,bhkd->bhqk", q, k) * (Dh ** -0.5)
        p = _softmax(scores, axis=-1)
        o = torch.einsum("bhqk,bhkd->bhqd", p, v)
        return (lambda x, *d: x.permute(*d))(o, 0, 2, 1, 3).reshape(B, Sq, Hq * Dh) @ wo

    def _B_ref(x, w_gate, w_up, w_down):
        return (_gelu(x @ w_gate) * (x @ w_up)) @ w_down

    x = A_x
    x = x + _A_ref(_layernorm(x, axis=-1), A_k_cache, A_v_cache, A_wq, A_wo)
    x = x + _B_ref(_layernorm(x, axis=-1), B_w_gate, B_w_up, B_w_down)
    x = x + _A_ref(_layernorm(x, axis=-1), A_k_cache, A_v_cache, A_wq, A_wo)
    x = x + _B_ref(_layernorm(x, axis=-1), B_w_gate, B_w_up, B_w_down)
    return x
```

```python
KN = "interleave_layers__sliding_block_cached__geglu_ffn__decode_kernel"
def hdr(A, nthreads, lds=0):
    A(f"; @launch grid=(256,1,1) block=({nthreads},1,1) lds={lds}")
    A('.amdgcn_target "amdgcn-amd-amdhsa--gfx950"')
    A(".text"); A(f".globl {KN}"); A(".p2align 8"); A(f".type {KN},@function"); A(f"{KN}:")
def ftr(A, nv=128, acc=128):
    A("L_end:"); A("s_endpgm")
    A('.section .rodata,"a"'); A(".p2align 6"); A(f".amdhsa_kernel {KN}")
    A(f".amdhsa_next_free_vgpr {nv}"); A(f".amdhsa_accum_offset {acc}")
    A(".amdhsa_next_free_sgpr 96")
    A(".amdhsa_group_segment_fixed_size 0"); A(".amdhsa_kernarg_size 96"); A(".amdhsa_user_sgpr_count 2")
    A(".amdhsa_user_sgpr_kernarg_segment_ptr 1"); A(".amdhsa_system_sgpr_workgroup_id_x 1"); A(".end_amdhsa_kernel")

def gen(pat, sfl="sc1", lfl="sc1", R=8, grp="mod", nw=1, delay=0, cfl="sc1", G=64):
    L = []; A = L.append
    hdr(A, 64 * nw, lds=160*1024)
    A("s_cmp_ge_u32 s2, 256"); A("s_cbranch_scc1 L_end")
    A("s_load_dwordx2 s[8:9], s[0:1], 88")
    A("s_load_dwordx2 s[24:25], s[0:1], 80")
    A("v_lshrrev_b32 v1, 6, v0"); A("s_nop 0"); A("v_readfirstlane_b32 s3, v1"); A("v_and_b32 v0, 63, v0")
    lg = {32: 5, 64: 6, 256: 8}[G]
    if G == 256:
        A("s_mov_b32 s4, 0"); A("s_mov_b32 s5, s2")
    elif grp == "mod" and G == 64:
        A("s_and_b32 s4, s2, 7"); A("s_lshr_b32 s4, s4, 1")
        A("s_lshr_b32 s5, s2, 3"); A("s_lshl_b32 s5, s5, 1"); A("s_and_b32 s6, s2, 1"); A("s_add_u32 s5, s5, s6")
    elif grp == "mod" and G == 32:
        A("s_and_b32 s4, s2, 7"); A("s_lshr_b32 s5, s2, 3")
    else:
        A(f"s_lshr_b32 s4, s2, {lg}"); A(f"s_and_b32 s5, s2, {G-1}")
    A("s_waitcnt lgkmcnt(0)")
    A("s_add_u32 s16, s8, 0x100000"); A("s_addc_u32 s17, s9, 0"); A("s_mov_b32 s18, 0x4000000"); A("s_mov_b32 s19, 0x20000")
    def lanes(n):
        if n >= 64: return "-1"
        return hex((1 << n) - 1)
    def setmask(n):
        m = (1 << n) - 1 if n < 64 else (1 << 64) - 1
        A(f"s_mov_b32 s20, {hex(m & 0xffffffff)}"); A(f"s_mov_b32 s21, {hex(m >> 32)}")
    lmask = 64
    if pat.startswith("AG"):
        pb = int(pat[2:])
        gb = G * pb
        A(f"s_mul_i32 s10, s5, {pb}"); A("v_lshlrev_b32 v2, 4, v0"); A("v_add_u32 v2, s10, v2")
        setmask(pb // 16); stoff = [i * 1024 for i in range(max(1, pb // 1024))]
        tot = gb // nw
        A(f"s_mul_i32 s10, s3, {tot}"); A("v_lshlrev_b32 v3, 4, v0"); A("v_add_u32 v3, s10, v3"); ldoff = [i * 1024 for i in range(max(1, tot // 1024))]
        lmask = min(64, tot // 16)
    elif pat.startswith("RS"):
        cb = int(pat[2:]); pb = G * cb; gb = G * pb
        A(f"s_mul_i32 s10, s5, {pb}"); A("v_lshlrev_b32 v2, 4, v0"); A("v_add_u32 v2, s10, v2"); setmask(pb // 16)
        stoff = [i * 1024 for i in range(max(1, pb // 1024))]
        lpp = cb // 16; ppi = 64 // lpp
        sh = lpp.bit_length() - 1
        A(f"v_lshrrev_b32 v3, {sh}, v0"); A(f"s_mov_b32 s10, {pb}"); A("v_mul_lo_u32 v3, v3, s10")
        A(f"v_and_b32 v1, {lpp-1}, v0"); A("v_lshlrev_b32 v1, 4, v1"); A("v_add_u32 v3, v3, v1")
        ninst = max(1, G // ppi // nw)
        A(f"s_mul_i32 s10, s5, {cb}"); A(f"s_mul_i32 s12, s3, {ninst * ppi * pb}"); A("s_add_u32 s10, s10, s12"); A("v_add_u32 v3, s10, v3")
        ldoff = [i * ppi * pb for i in range(ninst)]
        lmask = min(64, G * lpp)
    elif pat in ("PP", "PPS"):
        gb = G * 128
        A("s_lshl_b32 s10, s5, 7"); A("v_mov_b32 v2, s10"); setmask(1); stoff = [0]
        A(f"s_xor_b32 s10, s5, {1 if pat == 'PP' else 2}"); A("s_lshl_b32 s10, s10, 7"); A("v_mov_b32 v3, s10"); ldoff = [0]
        lmask = 1
    rb = gb * (256 // G)
    A(f"s_mul_i32 s7, s4, {gb}")
    m = (1 << lmask) - 1
    A(f"s_mov_b32 s22, {hex(m & 0xffffffff)}"); A(f"s_mov_b32 s23, {hex(m >> 32)}")
    for i in range(4): A(f"v_mov_b32 v{4+i}, -1")
    A("s_cmp_eq_u32 s3, 0"); A("s_cbranch_scc0 L_noclear")
    A("s_mov_b64 exec, s[20:21]")
    for r in range(R + 1):
        for o in stoff:
            A(f"s_add_u32 s12, s7, {r * rb + (o & ~4095)}")
            A(f"buffer_store_dwordx4 v[4:7], v2, s[16:19], s12 offen offset:{o & 4095} {cfl}")
    A("s_waitcnt vmcnt(0)")
    A("s_mov_b64 exec, 1")
    A("v_mov_b32 v8, 0"); A("v_mov_b32 v9, 1")
    A("global_atomic_add v8, v9, s[24:25] sc1")
    A("s_mov_b32 s31, 0")
    A("L_bar:")
    A("s_add_u32 s31, s31, 1"); A("s_cmp_gt_u32 s31, 3000"); A("s_cbranch_scc1 L_bardone")
    A("s_sleep 8")
    A("global_load_dword v10, v8, s[24:25] sc1"); A("s_waitcnt vmcnt(0)")
    A("v_readfirstlane_b32 s12, v10"); A("s_cmp_lt_u32 s12, 256"); A("s_cbranch_scc1 L_bar")
    A("L_bardone:")
    A("s_mov_b64 exec, -1")
    A("L_noclear:")
    if nw > 1: A("s_barrier")
    for i in range(4): A(f"v_mov_b32 v{4+i}, 1.0")
    A("s_mov_b32 s11, 0")
    A("s_mov_b32 s30, 0")
    A("L_round:")
    A("s_cmp_eq_u32 s11, 1"); A("s_cbranch_scc0 L_nostamp"); A("s_memrealtime s[40:41]"); A("s_mov_b32 s30, 0"); A("L_nostamp:")
    A("s_cmp_eq_u32 s3, 0"); A("s_cbranch_scc0 L_nostore")
    A("s_mov_b64 exec, s[20:21]")
    for o in stoff:
        A(f"s_add_u32 s12, s7, {o & ~4095}")
        A(f"buffer_store_dwordx4 v[4:7], v2, s[16:19], s12 offen offset:{o & 4095} {sfl}")
    A("L_nostore:")
    A("s_mov_b64 exec, s[22:23]")
    if delay == "w": A("s_waitcnt vmcnt(0)")
    elif delay: A(f"s_sleep {delay}")
    if delay == "w" and nw > 1: A("s_barrier")
    A("s_mov_b32 s31, 0")
    A("L_poll:")
    A("s_add_u32 s30, s30, 1")
    A("s_add_u32 s31, s31, 1"); A("s_cmp_gt_u32 s31, 3000"); A("s_cbranch_scc1 L_done")
    for i, o in enumerate(ldoff):
        A(f"s_add_u32 s12, s7, {o & ~4095}")
        A(f"buffer_load_dwordx4 v[{12+4*i}:{15+4*i}], v3, s[16:19], s12 offen offset:{o & 4095} {lfl}")
    for i in range(len(ldoff)):
        A(f"s_waitcnt vmcnt({len(ldoff)-1-i})")
        b = 12 + 4 * i
        if i == 0: A(f"v_max3_u32 v1, v{b}, v{b+1}, v{b+2}"); A(f"v_max_u32 v1, v1, v{b+3}")
        else: A(f"v_max3_u32 v1, v1, v{b}, v{b+1}"); A(f"v_max3_u32 v1, v1, v{b+2}, v{b+3}")
    A("v_cmp_eq_u32 vcc, -1, v1")
    A("s_cbranch_vccnz L_poll")
    A("s_mov_b64 exec, -1")
    if nw > 1: A("s_barrier")
    A(f"s_add_u32 s7, s7, {rb}")
    A("s_add_u32 s11, s11, 1"); A(f"s_cmp_le_u32 s11, {R}"); A("s_cbranch_scc1 L_round")
    A("L_done:")
    A("s_mov_b64 exec, -1")
    A("s_memrealtime s[42:43]")
    A("s_waitcnt lgkmcnt(0)")
    A("s_cmp_eq_u32 s3, 0"); A("s_cbranch_scc0 L_end")
    A("s_lshl_b32 s12, s2, 4")
    A("v_mov_b32 v4, s40"); A("v_mov_b32 v5, s42"); A("v_mov_b32 v6, s30"); A("v_mov_b32 v7, s11")
    A("v_mov_b32 v1, s12")
    A("v_cmp_eq_u32 vcc, 0, v0"); A("s_and_saveexec_b64 s[30:31], vcc")
    A("global_store_dwordx4 v1, v[4:7], s[8:9]")
    A("s_waitcnt vmcnt(0)")
    ftr(A, 256, 256)
    return "\n".join(L) + "\n"
if __name__ == "__main__":
    V = {}
    for lf in ("nt", "sc0", "sc1", "sc0 nt"):
        n = lf.replace(" ", "")
        V[f"PPS_plain_{n}"] = dict(pat="PPS", sfl="", lfl=lf, cfl="")
        V[f"PPS_plain_{n}_d2"] = dict(pat="PPS", sfl="", lfl=lf, cfl="", delay=2)
        V[f"AG256_G32_plain_{n}"] = dict(pat="AG256", G=32, sfl="", lfl=lf, cfl="", nw=8)
        V[f"AG256_G32_plain_{n}_w"] = dict(pat="AG256", G=32, sfl="", lfl=lf, cfl="", nw=8, delay="w")
    V[f"AG256_G32_nt_nt_w"] = dict(pat="AG256", G=32, sfl="nt", lfl="nt", cfl="", nw=8, delay="w")
    V[f"AG256_G32_sc0_nt_w"] = dict(pat="AG256", G=32, sfl="sc0", lfl="nt", cfl="", nw=8, delay="w")
    for d in (0, 4, 6, 8, "w"):
        V[f"PP_d{d}"] = dict(pat="PP", delay=d)
        V[f"AG256_G32_d{d}"] = dict(pat="AG256", G=32, nw=8, delay=d)
        V[f"AG128_G256_d{d}"] = dict(pat="AG128", G=256, nw=8, delay=d)
        V[f"AG32_d{d}"] = dict(pat="AG32", delay=d)
    for k, v in V.items():
        s = gen(**v)
        if v.get("nw", 1) == 16: s = s.replace("next_free_vgpr 256", "next_free_vgpr 128").replace("accum_offset 256", "accum_offset 128")
        open(f"mb2_{k}.s", "w").write(s)
    print(" ".join(f"mb2_{k}.s" for k in V))
```

```python
from gen_mb2 import hdr, ftr
L = []; A = L.append
hdr(A, 64, lds=0)
L[0] = "; @launch grid=(1024,1,1) block=(64,1,1) lds=65536"
for i in range(16384): A("s_mov_b32 s50, 0x12345678")
ftr(A, 128, 128)
open("icflush.s", "w").write("\n".join(L) + "\n")
```

```python
import re
TRANS = ("v_exp_f32", "v_log_f32", "v_rcp_f32", "v_rsq_f32", "v_sqrt_f32")
def regs(op):
    op = op.strip()
    op = op.lstrip("-")
    m = re.fullmatch(r"abs\((.*)\)", op)
    if m: op = m.group(1)
    m = re.fullmatch(r"([vs])\[(\d+):(\d+)\]", op)
    if m: return {(m.group(1), i) for i in range(int(m.group(2)), int(m.group(3)) + 1)}
    m = re.fullmatch(r"([vs])(\d+)", op)
    if m: return {(m.group(1), int(m.group(2)))}
    if op in ("vcc", "exec", "m0"): return {(op, 0)}
    return set()
class Ins:
    def __init__(s, text):
        s.text = text
        t = text.split(";")[0].strip()
        parts = t.split(None, 1)
        s.op = parts[0]
        rest = parts[1] if len(parts) > 1 else ""
        ops, cur, d = [], "", 0
        for ch in rest:
            if ch == "[": d += 1
            if ch == "]": d -= 1
            if ch == "," and d == 0: ops.append(cur); cur = ""
            else: cur += ch
        ops.append(cur)
        mods = ""
        if ops:
            l = ops[-1].strip().split(None, 1)
            ops[-1] = l[0] if l else ""
            mods = l[1] if len(l) > 1 else ""
        s.ops = [o.strip() for o in ops]; s.mods = mods
        op = s.op
        s.mfma = op.startswith("v_mfma") or op.startswith("v_smfmac")
        s.valu = op.startswith("v_") and not s.mfma
        s.dot = op.startswith("v_dot")
        s.trans = op.replace("_e32", "").replace("_e64", "") in TRANS
        s.dpp = op.endswith("_dpp")
        s.perml = op.startswith("v_permlane")
        s.rdlane = op.startswith("v_readlane") or op.startswith("v_readfirstlane")
        s.vmem = op.startswith("buffer_") or op.startswith("global_")
        s.ds = op.startswith("ds_")
        s.salu = op.startswith("s_")
        s.ldsdma = s.vmem and (" lds" in " " + mods or "_lds_" in op)
        R = [regs(o) for o in s.ops]
        s.W, s.R = set(), set()
        s.store_data = set()
        if s.mfma:
            s.W = R[0]; s.AB = R[1] | R[2]
            if op.startswith("v_smfmac"): s.C = R[0]; s.AB |= R[3]
            else: s.C = R[3]
            s.R = s.AB | s.C
        elif s.valu:
            s.W = set(R[0]);
            for r in R[1:]: s.R |= r
            if s.perml: s.W |= R[1]; s.R |= R[0]
            if s.dpp or op.startswith("v_fmac") or op.startswith("v_writelane") or op.startswith("v_dot2c"): s.R |= R[0]
            if s.dot: s.C = R[3] if len(R) > 3 else R[0]; s.AB = R[1] | R[2]
        elif s.vmem:
            if "store" in op or "atomic" in op:
                for r in R: s.R |= r
                d = R[0] if op.startswith("buffer_") else R[1]
                if "x4" in op or "x3" in op: s.store_data = d
            elif s.ldsdma:
                for r in R: s.R |= r
                s.R |= {("m0", 0)}
            else:
                s.W = R[0]
                for r in R[1:]: s.R |= r
        elif s.ds:
            if "read" in op or "swizzle" in op or "permute" in op:
                s.W = R[0]
                for r in R[1:]: s.R |= r
            else:
                for r in R: s.R |= r
        elif s.salu:
            if not (op.startswith("s_cmp") or op.startswith("s_cbranch") or op in ("s_waitcnt", "s_nop", "s_barrier", "s_sleep", "s_branch", "s_endpgm", "s_setprio")):
                s.W = R[0]
                for r in R[1:]: s.R |= r
            else:
                for r in R: s.R |= r
        s.states = 1
        if op == "s_nop": s.states = int(s.ops[0]) + 1
def isv(x): return {r for r in x if r[0] == "v"}
def iss(x): return {r for r in x if r[0] in ("s", "vcc")}
def need(p, c):
    n = 0
    pw = p.W
    if p.valu:
        vw = isv(pw)
        if c.dpp and vw & c.R: n = max(n, 2)
        if c.rdlane and vw & c.R: n = max(n, 1)
        if c.perml and vw & c.R: n = max(n, 2)
        if p.trans and c.valu and not c.trans and vw & c.R: n = max(n, 1)
        if p.trans and c.valu and c.trans and vw & c.R: n = max(n, 1)
        if c.mfma and vw & c.R: n = max(n, 2)
        if p.dot and vw & (c.R | c.W):
            if c.op == p.op and not (vw & c.AB): pass
            else: n = max(n, 3)
        sw = iss(pw)
        if sw:
            if c.valu and sw & c.R: n = max(n, 2)
            if c.valu and c.op.startswith("v_cndmask") and ("vcc", 0) in sw: n = max(n, 2)
            if c.vmem and sw & c.R: n = max(n, 5)
            if c.salu and sw & c.R: n = max(n, 1)
    if p.mfma:
        if c.mfma:
            if pw & c.AB: n = max(n, 8)
            if pw & c.C and pw != c.C: n = max(n, 6)
            if pw & c.W and pw != c.W: n = max(n, 8)
        elif pw & (c.R | c.W): n = max(n, 8)
        if c.valu and p.C & c.W: n = max(n, 3)
    if p.salu and ("m0", 0) in pw and c.ldsdma: n = max(n, 1)
    if p.store_data and p.store_data & c.W: n = max(n, 2)
    return n
class Asm:
    def __init__(s):
        s.L = []; s.hist = []; s.vm = []; s.nops = 0
    def raw(s, t): s.L.append(t)
    def label(s, name):
        s.L.append(name + ":")
    def flush(s):
        pad, dist = 0, 0
        for p in reversed(s.hist):
            k = 8 if p.mfma else 3 if p.dot else (5 if iss(p.W) else 2) if p.valu else 2 if p.store_data else 1 if p.salu and ("m0", 0) in p.W else 0
            pad = max(pad, k - dist); dist += p.states
            if dist > 10: break
        if pad > 0: s(f"s_nop {pad-1}")
    def __call__(s, text, tag=None):
        for line in text.split("\n"):
            line = line.strip()
            if not line: continue
            c = Ins(line)
            pad, dist = 0, 0
            for p in reversed(s.hist):
                k = need(p, c) - dist
                pad = max(pad, k)
                dist += p.states
                if dist > 10: break
            if pad > 0:
                nop = Ins(f"s_nop {pad-1}")
                s.L.append("    " + nop.text); s.hist.append(nop); s.nops += pad
            s.L.append("    " + line); s.hist.append(c)
            if c.vmem: s.vm.append(tag)
    def wait_vm(s, tag, slack=0):
        idx = max(i for i, t in enumerate(s.vm) if t == tag)
        n = len([t for t in s.vm[idx + 1:] if t != "opt"])
        assert n <= 63
        s(f"s_waitcnt vmcnt({n})")
    def text(s): return "\n".join(s.L) + "\n"
```

```python
import sys, math
from asmlib import Asm
KN = "interleave_layers__sliding_block_cached__geglu_ffn__decode_kernel"
HEADER = open("header.txt").read()
LS = 0x20000
OA, YB, LA, HC, XD = 0x0, 0x10000, 0x18000, 0x1C000, 0x1F000
QB = 131072; OB = QB + 256; S3B = OB + 8192; S4B = S3B + 2048; ST = S4B + 4096; S5B = ST + 128; LDS_END = S5B + 1024
X, QR, KR, VR = 32, 64, 128, 192
DPPF = "row_mask:0xf bank_mask:0xf"
def f2h(x):
    import struct
    return hex(struct.unpack("<I", struct.pack("<f", x))[0])
STAMP = [8 + 2 * i for i in range(10)] + [84 + 2 * i for i in range(6)]
def gen(dbg=False, dA=0, dB=0, dC=12, dDF=24, dDN=48, dDG=0, ackA=1, ackB=1, ackD=1, nt="nt", wnt="nt", ordbar=1, nv0=4, rsleep=1, dbgwave=0, tmo=400000, pf=1):
    a = Asm()
    def stamp(i):
        if dbg: a(f"s_memrealtime s[{STAMP[i]}:{STAMP[i]+1}]")
    def vr(b, n): return f"v[{b}:{b+n-1}]"
    retries = []
    def poll_check(name, regs_, cnt, tmp=6):
        r = list(regs_)
        first = True
        while r:
            if first:
                if len(r) >= 3: a(f"v_max3_u32 v{tmp}, v{r[0]}, v{r[1]}, v{r[2]}"); r = r[3:]
                else: a(f"v_max_u32 v{tmp}, v{r[0]}, v{r[1]}"); r = r[2:]
                first = False
            elif len(r) >= 2: a(f"v_max3_u32 v{tmp}, v{tmp}, v{r[0]}, v{r[1]}"); r = r[2:]
            else: a(f"v_max_u32 v{tmp}, v{tmp}, v{r[0]}"); r = r[1:]
        a(f"v_cmp_eq_u32 vcc, -1, v{tmp}")
        a(f"s_cbranch_vccnz L_retry_{name}")
        retries.append((name, cnt))
    def pack_store_prep(src, dst):
        a(f"v_mov_b32_dpp v{dst+1}, v{src} row_shl:1 {DPPF}")
        a(f"v_cvt_pk_bf16_f32 v{dst}, v{src}, v{dst+1}")
        a(f"v_min_u32 v{dst}, -2, v{dst}")
        for q in (1, 2, 3): a(f"v_mov_b32_dpp v{dst+q}, v{dst} row_shl:{2*q} {DPPF}")
    def dump():
        if not dbg: return
        n = dump.n = getattr(dump, "n", 0) + 1
        a(f"s_cmp_eq_u32 s3, {dbgwave}"); a(f"s_cbranch_scc0 L_nodump{n}")
        a("s_waitcnt lgkmcnt(0)")
        for i, s_ in enumerate(STAMP): a(f"v_writelane_b32 v7, s{s_}, {i}")
        for i in range(4): a(f"v_writelane_b32 v7, s{96+i}, {16+i}")
        a("v_writelane_b32 v7, s6, 20")
        a("s_lshl_b32 s78, s2, 8"); a("s_lshr_b32 s79, s7, 10"); a("s_add_u32 s78, s78, s79"); a("s_add_u32 s78, s78, 0x100000")
        a("v_lshlrev_b32 v6, 2, v0"); a("v_add_u32 v6, s78, v6")
        a("s_mov_b32 exec_hi, 0")
        a("global_store_dword v6, v7, s[30:31]")
        a("s_mov_b64 exec, -1")
        a.label(f"L_nodump{n}")

    a.raw(HEADER.rstrip("\n").replace("@LAUNCH@", f"; @launch grid=(256,1,1) block=(512,1,1) lds={LDS_END}"))
    a.label(KN)
    a("s_cmp_ge_u32 s2, 256"); a("s_cbranch_scc1 L_end")
    a("s_load_dwordx16 s[8:23], s[0:1], 0")
    a("s_load_dwordx8 s[24:31], s[0:1], 64")
    if dbg: a("s_memrealtime s[100:101]")
    a("v_lshrrev_b32 v1, 6, v0")
    a("v_and_b32 v0, 63, v0")
    a("v_readfirstlane_b32 s3, v1")
    a("s_and_b32 s4, s2, 7"); a("s_lshr_b32 s5, s2, 3")
    a("s_and_b32 s78, s5, 3"); a("s_lshl_b32 s79, s4, 2"); a("s_add_u32 s78, s78, s79")
    a("s_lshr_b32 s73, s5, 2"); a("s_and_b32 s73, s73, 3")
    a("s_lshl_b32 s79, s73, 5"); a("s_add_u32 s79, s79, s78"); a("s_lshl_b32 s79, s79, 20")
    a("s_lshr_b32 s80, s5, 4"); a("s_lshl_b32 s80, s80, 17"); a("s_add_u32 s79, s79, s80"); a("s_add_u32 s79, s79, 0xC0000")
    a("s_lshl_b32 s78, s78, 8")
    a("v_lshlrev_b32 v5, 4, v0")
    a("v_lshrrev_b32 v8, 4, v0")
    a("v_and_b32 v9, 15, v0")
    a("v_and_b32 v10, 1, v8"); a("v_lshlrev_b32 v10, 1, v10"); a("v_xor_b32 v10, v10, v9")
    a("s_and_b32 s80, s3, 3"); a("s_lshl_b32 s80, s80, 2"); a("v_xor_b32 v10, s80, v10"); a("v_lshlrev_b32 v10, 4, v10")
    a("s_lshl_b32 s80, s3, 2"); a("v_add_u32 v6, s80, v8"); a("v_lshl_add_u32 v6, v6, 13, v10")
    a("s_lshl_b32 s81, s3, 12")
    a("s_lshl_b32 s82, s3, 10")
    a("s_lshl_b32 s76, s3, 14")
    a("s_mov_b32 s34, 0x20000"); a("s_mov_b32 s35, 0x20000"); a("s_mov_b32 s38, 0x20000"); a("s_mov_b32 s39, 0x20000")
    a("s_mov_b32 s43, 0x20000"); a("s_mov_b32 s46, 0x40000"); a("s_mov_b32 s47, 0x20000")
    a("s_sub_u32 s42, 0x400000, s78")
    a("s_waitcnt lgkmcnt(0)")
    a("s_add_u32 s32, s10, s79"); a("s_addc_u32 s33, s11, 0")
    a("s_add_u32 s40, s14, s78"); a("s_addc_u32 s41, s15, 0")
    a("s_add_u32 s36, s12, s79"); a("s_addc_u32 s37, s13, 0")
    a("s_mov_b32 s44, s30"); a("s_mov_b32 s45, s31")
    a("s_cmp_eq_u32 s3, 7"); a("s_cbranch_scc1 L_clear")
    if pf:
        a("s_cmp_eq_u32 s3, 6"); a("s_cbranch_scc1 L_pref")
    a.label("L_start")
    def kvload(srd, n, dst, tag):
        if n % 4 == 0: a(f"s_add_u32 s83, s81, {(n // 4) * 32768}")
        a(f"buffer_load_dwordx4 {vr(dst, 4)}, v5, {srd}, s83 offen offset:{(n % 4) * 1024} {nt}", tag)
    def small_setup():
        a("s_and_b32 s74, s5, 1")
        a("s_lshr_b32 s78, s5, 1"); a("s_mul_i32 s75, s4, 11"); a("s_add_u32 s75, s75, s78")
        a("s_mov_b32 s6, 0")
        a("s_cmp_lt_u32 s75, 86"); a("s_cselect_b32 s6, 1, 0")
        a("s_cmp_lt_u32 s5, 22"); a("s_cselect_b32 s6, s6, 0")
        a("s_lshl_b32 s79, s4, 2"); a("s_add_u32 s79, s79, s78"); a("s_sub_u32 s79, s79, 12")
        a("s_cmp_ge_u32 s5, 24"); a("s_cselect_b32 s6, 2, s6"); a("s_cselect_b32 s75, s79, s75")
        a("v_lshrrev_b32 v10, 1, v9"); a("v_lshlrev_b32 v10, 7, v10"); a("v_lshl_add_u32 v10, v8, 5, v10")
        a("v_and_b32 v11, 1, v9"); a("v_lshl_add_u32 v10, v11, 4, v10"); a("s_lshl_b32 s78, s73, 10"); a("v_add_u32 v10, s78, v10")
        a("global_load_dwordx4 v[16:19], v10, s[8:9]", "x0")
        resF_addr(10, 8, 9)
        a("global_load_dword v3, v10, s[8:9]", "x0")
        a("s_and_b32 s78, s75, 31"); a("s_lshl_b32 s78, s78, 5"); a("s_lshl_b32 s79, s74, 11"); a("s_add_u32 s78, s78, s79")
        a("v_and_b32 v10, 1, v8"); a("v_lshlrev_b32 v10, 10, v10"); a("v_lshl_add_u32 v10, v9, 1, v10"); a("v_add_u32 v10, s78, v10")
        a("global_load_ushort v4, v10, s[8:9]", "x0")
        a("v_mov_b32 v1, 0x4444"); a("v_mov_b32 v10, 0xeeee"); a("v_cmp_eq_u32 vcc, 1, v11"); a("v_cndmask_b32 v1, v1, v10, vcc")
        a("s_mov_b32 s68, 0x3f803f80"); a("s_mov_b32 s69, 0x05040100"); a("s_mov_b32 s70, 0x07060302"); a("s_mov_b32 s71, 0x3f80"); a("s_mov_b32 s72, 0x3f800000")
        a("s_mov_b32 s7, 0")
        a("s_lshl_b32 s78, s4, 19"); a("s_lshl_b32 s79, s3, 16"); a("s_add_u32 s78, s78, s79"); a("s_lshl_b32 s79, s5, 5"); a("s_add_u32 s78, s78, s79")
        a("s_add_u32 s60, s16, s78"); a("s_addc_u32 s61, s17, 0"); a("s_sub_u32 s62, 0x400000, s78"); a("s_mov_b32 s63, 0x20000")
        a("s_lshl_b32 s79, s75, 5")
        a("s_mul_i32 s78, s3, %d" % (64 * 2752)); a("s_add_u32 s78, s78, s79")
        a("s_mul_i32 s80, s3, %d" % (192 * 1024)); a("s_add_u32 s80, s80, s79")
        a("s_cmp_eq_u32 s6, 2")
        a("s_cselect_b32 s78, s80, s78")
        a("s_cselect_b32 s48, s24, s20"); a("s_cselect_b32 s49, s25, s21")
        a("s_cselect_b32 s52, s24, s22"); a("s_cselect_b32 s53, s25, s23")
        a("s_cselect_b32 s79, 65536, 0")
        a("s_movk_i32 s77, 2752"); a("s_cselect_b32 s77, 1024, s77")
        a("s_sub_u32 s50, %d, s78" % (1376 * 1024))
        a("s_add_u32 s48, s48, s78"); a("s_addc_u32 s49, s49, 0")
        a("s_add_u32 s78, s78, s79")
        a("s_sub_i32 s54, %d, s78" % (1376 * 1024)); a("s_max_i32 s54, s54, 0")
        a("s_add_u32 s52, s52, s78"); a("s_addc_u32 s53, s53, 0")
        a("s_add_u32 s78, s78, s79")
        a("s_sub_i32 s58, %d, s78" % (1376 * 1024)); a("s_max_i32 s58, s58, 0")
        a("s_add_u32 s56, s24, s78"); a("s_addc_u32 s57, s25, 0")
        a("s_cmp_eq_u32 s6, 2"); a("s_cselect_b32 s58, s58, 0")
        a("s_cmp_eq_u32 s6, 0"); a("s_cselect_b32 s50, 0, s50"); a("s_cselect_b32 s54, 0, s54")
        a("s_mov_b32 s51, 0x20000"); a("s_mov_b32 s55, 0x20000"); a("s_mov_b32 s59, 0x20000")
        a("s_add_u32 s64, s30, %d" % XD); a("s_addc_u32 s65, s31, 0"); a("s_mov_b32 s66, 4096"); a("s_mov_b32 s67, 0x20000")
        for i in range(4): a(f"s_mov_b32 s{96+i}, 0")
    def resF_addr(d, g, j):
        a(f"v_and_b32 v{d}, 2, v{j}"); a(f"v_lshlrev_b32 v{d}, 9, v{d}"); a(f"v_lshl_add_u32 v{d}, v{g}, 5, v{d}")
        a(f"v_and_b32 v12, 1, v{j}"); a(f"v_lshl_add_u32 v{d}, v12, 4, v{d}")
        a(f"v_and_b32 v12, 12, v{j}"); a(f"v_add_u32 v{d}, v12, v{d}")
        a("s_lshl_b32 s78, s74, 11"); a("s_lshl_b32 s79, s3, 7"); a("s_add_u32 s78, s78, s79"); a(f"v_add_u32 v{d}, s78, v{d}")
    for n in range(16):
        kvload("s[32:35]", n, KR + 4 * n, "K")
        a(f"s_add_u32 m0, s82, {n * 8192}")
        a(f"s_mov_b32 s80, {n * 262144}")
        a(f"buffer_load_dwordx4 v6, s[40:43], s80 offen {wnt} lds", "W")
        if n == 1: small_setup()
    if dbg:
        a("s_waitcnt lgkmcnt(0)")
        a("s_mov_b32 s94, s26"); a("s_mov_b32 s95, s27")
        a(f"s_mov_b32 s{STAMP[0]}, s100")
    if ordbar: a("s_barrier")
    def vload(n): kvload("s[36:39]", n, (VR + 8 * n + 4) if n < 8 else (X + 4 * (n - 8)), f"V{n}")
    for n in range(nv0): vload(n)
    a("v_lshrrev_b32 v10, 2, v9")
    a("v_and_b32 v11, 1, v10"); a("v_lshrrev_b32 v10, 1, v10")
    a("v_and_b32 v12, 1, v8"); a("v_lshrrev_b32 v13, 1, v8")
    a("v_lshl_add_u32 v14, v12, 2, v11"); a("v_lshl_add_u32 v14, v10, 3, v14"); a("v_lshl_add_u32 v14, v13, 4, v14")
    a("v_lshl_add_u32 v15, v12, 1, v11"); a("v_lshl_add_u32 v15, v10, 2, v15"); a("v_xor_b32 v15, s3, v15")
    a("v_lshlrev_b32 v14, 8, v14"); a("v_lshl_add_u32 v14, v15, 5, v14"); a("v_and_b32 v15, 3, v9"); a("v_lshl_add_u32 v14, v15, 3, v14")
    a("v_add_u32 v15, 0x10000, v14")
    for i in range(4): a(f"v_mov_b32 v{20+i}, s68")
    for i in range(2): a(f"v_mov_b32 v{24+i}, 0")
    a.wait_vm("W")
    a("s_barrier")
    stamp(1)
    for i in range(4): a(f"v_mov_b32 v{8+i}, v{16+i}")
    a("v_lshlrev_b32 v4, 16, v4")
    nv = nv0
    for u in range(8):
        for n_ in range(4):
            off = (64 * u + 32 * (n_ >> 1) + 2 * (n_ & 1)) * 256
            a(f"ds_read_b64_tr_b16 {vr(QR + 8*u + 2*n_, 2)}, v{14 if off < 65536 else 15} offset:{off & 65535}")
        if u % 2 == 1 and nv < 8: vload(nv); nv += 1
    while nv < 8: vload(nv); nv += 1
    def zero_s1():
        for u in range(8):
            for k in range(2): a(f"v_mov_b32 v{X + 4*u + 2*(u&1) + k}, 0")
    zero_s1()
    a("s_waitcnt lgkmcnt(0)")
    for u in range(8): a(f"v_smfmac_f32_16x16x64_bf16 v[24:27], v[20:23], {vr(QR + 8*u, 8)}, v1")
    a("v_add_f32 v2, v24, v25")
    def s1_prep():
        a("v_and_b32 v12, 15, v0"); a("v_lshrrev_b32 v13, 4, v0")
        a("v_and_b32 v14, 1, v12"); a("v_lshlrev_b32 v7, 5, v13"); a("v_lshl_add_u32 v7, v14, 4, v7"); a(f"v_add_u32 v7, {QB}, v7")
        a("v_and_b32 v6, 2, v12"); a("v_lshlrev_b32 v6, 3, v6"); a("v_and_b32 v15, 12, v12"); a("v_add_u32 v6, v6, v15"); a("v_lshl_add_u32 v6, v14, 1, v6")
        a("s_lshl_b32 s78, s3, 5"); a(f"s_add_u32 s78, s78, {QB}"); a("v_add_u32 v6, s78, v6")
        for t in range(4):
            for k in range(2): a(f"v_mov_b32 v{16 + 4*t + k}, 0")
    s1_prep()
    a.label("L_S1")
    stamp(2)
    side = []
    side.append("v_dot2_f32_bf16 v12, v8, s68, 0"); side.append("v_dot2_f32_bf16 v13, v8, v8, 0")
    for i in (9, 10, 11):
        side.append(f"v_dot2_f32_bf16 v12, v{i}, s68, v12"); side.append(f"v_dot2_f32_bf16 v13, v{i}, v{i}, v13")
    dp = []
    for m in ("row_ror:8", "row_ror:4", "row_ror:2", "row_ror:1"):
        dp.append([f"v_add_f32_dpp v12, v12, v12 {m} {DPPF}", f"v_add_f32_dpp v13, v13, v13 {m} {DPPF}"])
    dp.append([f"v_add_f32_dpp v{r}, v{r}, v{r} row_bcast:15 row_mask:0xa bank_mask:0xf" for r in (12, 13)])
    dp.append([f"v_add_f32_dpp v{r}, v{r}, v{r} row_bcast:31 row_mask:0xc bank_mask:0xf" for r in (12, 13)])
    sched = [side[0:4], side[4:8], [], dp[0], dp[1], dp[2], dp[3], dp[4]]
    for u in range(8):
        a(f"v_smfmac_f32_16x16x64_bf16 {vr(X + 4*u, 4)}, v[8:11], {vr(QR + 8*u, 8)}, v1")
        for l in sched[u]: a(l)
    def zadd(gm):
        return [f"v_add_f32_dpp v14, v{X+8*gm}, v{X+8*gm+1} quad_perm:[0,1,2,3] row_mask:{hex(1<<gm)} bank_mask:0xf",
                f"v_add_f32_dpp v15, v{X+8*gm+6}, v{X+8*gm+7} quad_perm:[0,1,2,3] row_mask:{hex(1<<gm)} bank_mask:0xf"]
    for l in zadd(0): a(l)
    for l in dp[5]: a(l)
    for l in zadd(1): a(l)
    a(f"v_mul_f32 v12, {f2h(1/512)}, v12")
    for l in zadd(2): a(l)
    a("v_mul_f32 v8, v12, v12")
    for l in zadd(3): a(l)
    a(f"v_mov_b32 v9, {f2h(1/512)}")
    a("v_fma_f32 v13, v13, v9, -v8")
    a("v_add_f32 v10, v14, v15"); a("v_add_f32 v11, v14, v15")
    a("v_max_f32 v13, 0, v13")
    a(f"v_add_f32 v13, {f2h(1e-5)}, v13")
    a("v_permlane32_swap_b32 v10, v11")
    a("v_rsq_f32 v13, v13")
    a("v_add_f32 v14, v10, v11"); a("v_add_f32 v15, v10, v11")
    a("v_mul_f32 v12, v12, v2")
    a("v_mul_f32 v12, v12, v13")
    a("v_permlane16_swap_b32 v14, v15")
    a("v_add_f32 v14, v14, v15")
    a("v_fma_f32 v14, v14, v13, -v12")
    a("v_cvt_pk_bf16_f32 v14, v14, v14")
    a("s_mov_b32 exec_lo, 0"); a("s_mov_b32 exec_hi, 0xffff0000")
    a("ds_write_b16 v6, v14")
    a("s_mov_b64 exec, -1")
    a("s_waitcnt lgkmcnt(0)")
    a("s_barrier")
    stamp(3)
    a("s_cmp_eq_u32 s7, 0"); a("s_cbranch_scc1 L_int1")
    a.label("L_QK")
    a("ds_read_b128 v[8:11], v7"); a("ds_read_b128 v[12:15], v7 offset:128")
    if dbg: a("s_waitcnt lgkmcnt(0)")
    for c in range(2):
        a(f"s_waitcnt lgkmcnt({1-c})")
        for t in range(4): a(f"v_smfmac_f32_16x16x64_bf16 {vr(16 + 4*t, 4)}, {vr(8 + 4*c, 4)}, {vr(KR + 16*t + 8*c, 8)}, v1")
    a("v_and_b32 v7, 15, v0"); a("v_cmp_gt_u32 vcc, 2, v7"); a("v_lshrrev_b32 v6, 4, v0")
    a("v_lshl_add_u32 v7, v6, 2, v7"); a("v_cndmask_b32 v15, 0, -1, vcc")
    for t in range(4):
        a(f"v_add_f32 v{8+t}, v{16+4*t}, v{17+4*t}")
    a("v_max3_f32 v12, v8, v9, v10"); a("v_max_f32 v12, v12, v11")
    fill = [[f"v_mov_b32_dpp v8, v9 quad_perm:[0,1,2,3] row_mask:0x2 bank_mask:0xf", "v_and_b32 v7, 15, v7"],
            ["v_lshl_add_u32 v7, v6, 4, v7", f"v_mov_b32_dpp v8, v10 quad_perm:[0,1,2,3] row_mask:0x4 bank_mask:0xf"],
            ["v_lshlrev_b32 v7, 4, v7", "v_mov_b32 v24, 0"],
            [f"v_mov_b32_dpp v8, v11 quad_perm:[0,1,2,3] row_mask:0x8 bank_mask:0xf", "v_mov_b32 v25, 0"]]
    for i, m in enumerate(("row_ror:8", "row_ror:4", "row_ror:2", "row_ror:1")):
        for l in fill[i]: a(l)
        a(f"v_max_f32_dpp v12, v12, v12 {m} {DPPF}")
    SC = (128 ** -0.5) * math.log2(math.e)
    a(f"s_mov_b32 s78, {f2h(SC)}")
    a("v_mul_f32 v30, s78, v12")
    a("v_fma_f32 v8, v8, s78, -v30")
    a("v_exp_f32 v31, v8")
    a("v_mov_b32 v26, 0"); a("v_mov_b32 v27, 0")
    a(f"v_mov_b32_dpp v9, v31 row_shl:2 {DPPF}")
    a("v_cvt_pk_bf16_f32 v9, v31, v9")
    a("s_lshl_b32 s78, s3, 10"); a(f"s_add_u32 s78, s78, {OB}")
    a("v_and_b32 v16, v9, v15")
    for q in (1, 2, 3): a(f"v_and_b32_dpp v{16+q}, v9, v15 row_shl:{4*q} {DPPF} bound_ctrl:0")
    a("v_add_u32 v7, s78, v7")
    stamp(4)
    a("s_cmp_eq_u32 s7, 0"); a("s_cbranch_scc1 L_int2")
    a.label("L_PV")
    stamp(5)
    lred = [[f"v_add_f32_dpp v31, v31, v31 {m} {DPPF}"] for m in ("row_ror:8", "row_ror:4", "row_ror:2", "row_ror:1")]
    lred += [["v_mov_b32 v8, v31"], ["v_permlane32_swap_b32 v31, v8", "v_add_f32 v9, v31, v8", "v_add_f32 v31, v31, v8"], ["v_permlane16_swap_b32 v31, v9", "v_add_f32 v31, v31, v9"], []]
    for t in range(8):
        cur = 16 + 4 * (t & 1); nxt = 16 + 4 * ((t + 1) & 1)
        if t < 7:
            for q in range(4): a(f"v_mov_b32_dpp v{nxt+q}, v{cur+q} row_ror:2 {DPPF}")
        a(f"v_smfmac_f32_16x16x64_bf16 v[24:27], {vr(cur, 4)}, {vr(VR + 8*t, 8)}, v1")
        for l in lred[t]: a(l)
    a("v_lshrrev_b32 v8, 2, v0"); a("v_and_b32 v9, 3, v0"); a("v_lshl_add_u32 v8, v9, 2, v8"); a("v_and_b32 v8, 15, v8")
    a("v_lshl_add_u32 v8, v9, 4, v8"); a("v_lshlrev_b32 v8, 4, v8"); a(f"v_add_u32 v8, {OB}, v8")
    a("v_add_f32 v28, v24, v25"); a("v_add_f32 v29, v26, v27")
    a("ds_write_b128 v7, v[28:31]")
    a("s_and_b32 s78, s5, 3"); a("s_lshl_b32 s79, s4, 2"); a("s_add_u32 s78, s78, s79"); a("s_lshl_b32 s78, s78, 3")
    a("s_lshl_b32 s79, s73, 1"); a("s_add_u32 s78, s78, s79"); a("s_lshr_b32 s79, s5, 4"); a("s_add_u32 s78, s78, s79")
    a("s_lshl_b32 s79, s78, 6"); a("s_lshl_b32 s78, s78, 8"); a("s_add_u32 s78, s78, s7"); a("s_add_u32 s79, s79, s7"); a(f"s_add_u32 s79, s79, {LA}")
    a("s_cmp_eq_u32 s3, 0")
    a("s_waitcnt lgkmcnt(0)")
    a("s_barrier")
    stamp(6)
    a("s_cbranch_scc0 L_A_done")
    for w in range(8): a(f"ds_read_b128 {vr(X + 4*w, 4)}, v8 offset:{w*1024}")
    a("v_lshlrev_b32 v9, 2, v0")
    a("s_waitcnt lgkmcnt(0)")
    m = lambda w: X + 4 * w + 2
    a(f"v_max3_f32 v10, v{m(0)}, v{m(1)}, v{m(2)}"); a(f"v_max3_f32 v11, v{m(3)}, v{m(4)}, v{m(5)}")
    a(f"v_max3_f32 v10, v10, v{m(6)}, v{m(7)}"); a("v_max_f32 v10, v10, v11")
    for w in range(8): a(f"v_sub_f32 v{m(w)}, v{m(w)}, v10")
    for w in range(8): a(f"v_exp_f32 v{m(w)}, v{m(w)}")
    a(f"v_mul_f32 v11, v{m(0)}, v{m(0)+1}")
    for w in range(1, 8): a(f"v_fmac_f32 v11, v{m(w)}, v{m(w)+1}")
    a("v_rcp_f32 v14, v11")
    a(f"v_pk_mul_f32 v[12:13], {vr(X,2)}, {vr(m(0),2)} op_sel_hi:[1,0]")
    a("v_log_f32 v11, v11")
    for w in range(1, 8): a(f"v_pk_fma_f32 v[12:13], {vr(X+4*w,2)}, {vr(m(w),2)}, v[12:13] op_sel_hi:[1,0,1]")
    a("v_pk_mul_f32 v[12:13], v[12:13], v[14:15] op_sel_hi:[1,0]")
    a("v_cvt_pk_bf16_f32 v16, v12, v13")
    a("v_min_u32 v16, -2, v16")
    a("v_add_f32 v11, v11, v10"); a("v_min_u32 v11, -2, v11")
    for q in (1, 2, 3): a(f"v_mov_b32_dpp v{16+q}, v16 quad_perm:[{q},{q},{q},{q}] {DPPF}")
    a("s_mov_b32 exec_lo, 0x11111111"); a("s_mov_b32 exec_hi, 0x11111111")
    a("buffer_store_dwordx4 v[16:19], v9, s[44:47], s78 offen sc1")
    a("s_mov_b64 exec, 1")
    a("buffer_store_dword v11, v9, s[44:47], s79 offen sc1")
    a("s_mov_b64 exec, -1")
    stamp(7)
    a.label("L_A_done")
    a("s_waitcnt vmcnt(0)")
    a("v_lshl_add_u32 v6, v0, 3, s76")
    for blk in range(4):
        for n_ in range(4): a(f"ds_read_b64_tr_b16 {vr(X + 8*blk + 2*n_, 2)}, v6 offset:{blk*2048 + n_*512}")
    a("v_and_b32 v12, 15, v0"); a("v_lshrrev_b32 v13, 4, v0")
    a("v_lshrrev_b32 v14, 1, v12"); a("v_lshlrev_b32 v14, 8, v14"); a("v_lshl_add_u32 v14, v13, 5, v14"); a("v_and_b32 v15, 1, v12"); a("v_lshl_add_u32 v20, v15, 4, v14")
    a("v_lshlrev_b32 v21, 7, v13")
    a("s_lshr_b32 s78, s3, 1"); a("s_lshl_b32 s79, s4, 2"); a("s_add_u32 s78, s78, s79")
    a("s_lshl_b32 s79, s78, 9"); a("s_add_u32 s79, s79, s7"); a(f"s_add_u32 s79, s79, {LA}")
    a("s_lshl_b32 s78, s78, 11"); a("s_and_b32 s80, s3, 1"); a("s_lshl_b32 s80, s80, 7"); a("s_add_u32 s78, s78, s80"); a("s_add_u32 s78, s78, s7")
    for i in range(4): a(f"v_mov_b32 v{16+i}, 0")
    a("s_lshl_b32 s80, s3, 8"); a(f"s_add_u32 s80, s80, {S3B}"); a("v_lshl_add_u32 v7, v0, 2, s80")
    a(f"v_lshlrev_b32 v22, 2, v0"); a(f"v_add_u32 v22, {S3B}, v22")
    a("v_lshrrev_b32 v23, 3, v0"); a("v_lshlrev_b32 v23, 4, v23")
    a("s_lshl_b32 s81, s4, 5"); a("s_add_u32 s81, s81, s5"); a("s_lshl_b32 s81, s81, 7"); a("s_add_u32 s81, s81, s7"); a(f"s_add_u32 s81, s81, {YB}")
    a("s_waitcnt lgkmcnt(0)")
    a("s_barrier")
    if dA: a(f"s_sleep {dA}")
    a.label("L_poll_A")
    a("buffer_load_dwordx4 v[8:11], v20, s[44:47], s78 offen sc1")
    a("buffer_load_dword v12, v21, s[44:47], s79 offen sc1")
    a("buffer_load_dword v13, v21, s[44:47], s79 offen offset:64 sc1")
    a("s_waitcnt vmcnt(0)")
    poll_check("A", [8, 9, 10, 11, 12, 13], 96)
    stamp(8)
    a(f"v_smfmac_f32_16x16x64_bf16 v[16:19], v[8:11], {vr(X, 8)}, v1")
    a("v_sub_f32 v12, v13, v12"); a("v_exp_f32 v12, v12"); a("s_cmp_eq_u32 s3, 0"); a("v_add_f32 v12, 1.0, v12"); a("v_rcp_f32 v12, v12")
    a("v_add_f32 v16, v16, v17"); a("v_add_f32 v18, v18, v19"); a("v_sub_f32 v16, v16, v18"); a("v_fmac_f32 v18, v12, v16")
    a("ds_write_b32 v7, v18")
    a("s_waitcnt lgkmcnt(0)")
    a("s_barrier")
    stamp(9)
    a("s_cbranch_scc0 L_Y_done")
    for i in range(4): a(f"ds_read2st64_b32 {vr(8+2*i, 2)}, v22 offset0:{2*i} offset1:{2*i+1}")
    a("s_waitcnt lgkmcnt(0)")
    a("v_pk_add_f32 v[8:9], v[8:9], v[10:11]"); a("v_pk_add_f32 v[12:13], v[12:13], v[14:15]"); a("v_pk_add_f32 v[8:9], v[8:9], v[12:13]"); a("v_add_f32 v8, v8, v9")
    pack_store_prep(8, 12)
    a("s_mov_b32 exec_lo, 0x01010101"); a("s_mov_b32 exec_hi, 0x01010101")
    a("buffer_store_dwordx4 v[12:15], v23, s[44:47], s81 offen sc1")
    a("s_mov_b64 exec, -1")
    stamp(10)
    a.label("L_Y_done")
    a("s_cmp_eq_u32 s6, 1"); a("s_cbranch_scc0 L_notF")
    a("v_and_b32 v20, 15, v0"); a("v_lshrrev_b32 v21, 4, v0")
    a("v_lshlrev_b32 v22, 7, v21"); a("v_and_b32 v23, 3, v20"); a("v_lshl_add_u32 v22, v23, 4, v22"); a("v_and_b32 v23, 12, v20"); a("v_add_u32 v22, v22, v23")
    a("s_lshl_b32 s78, s3, 9"); a("s_lshl_b32 s79, s74, 6"); a("s_add_u32 s78, s78, s79"); a("s_add_u32 s78, s78, s7"); a(f"s_add_u32 s78, s78, {YB}")
    a("v_add_u32 v22, s78, v22")
    for i in range(4): a(f"v_mov_b32 v{16+i}, s68")
    for i in range(8): a(f"v_mov_b32 v{24+i}, 0")
    a("s_lshl_b32 s80, s3, 9"); a(f"s_add_u32 s80, s80, {S4B}"); a("v_lshl_add_u32 v7, v0, 4, s80")
    a("v_and_b32 v23, 2, v0"); a("v_lshlrev_b32 v23, 5, v23"); a("v_lshrrev_b32 v6, 5, v0"); a("v_lshl_add_u32 v23, v6, 2, v23")
    a("s_lshl_b32 s80, s3, 3"); a(f"s_add_u32 s80, s80, {ST}"); a("v_add_u32 v23, s80, v23")
    a(f"v_lshlrev_b32 v{X+24}, 16, v3"); a(f"v_and_b32 v{X+25}, 0xffff0000, v3")
    a(f"v_lshlrev_b32 v{X+26}, 4, v20"); a(f"v_lshl_add_u32 v{X+26}, v21, 2, v{X+26}"); a(f"v_add_u32 v{X+26}, {S4B}, v{X+26}")
    a(f"v_and_b32 v{X+27}, 1, v21"); a(f"v_lshlrev_b32 v{X+27}, 6, v{X+27}"); a(f"v_add_u32 v{X+27}, {ST}, v{X+27}")
    a(f"v_lshrrev_b32 v{X+28}, 3, v0"); a(f"v_lshlrev_b32 v{X+28}, 4, v{X+28}")
    a("s_mul_i32 s81, s74, 88"); a("s_add_u32 s81, s81, s75"); a("s_lshl_b32 s81, s81, 6"); a("s_add_u32 s81, s81, s7"); a(f"s_add_u32 s81, s81, {HC}")
    if ackB: a("s_waitcnt vmcnt(0)")
    a("s_barrier")
    if dB: a(f"s_sleep {dB}")
    a.label("L_poll_B")
    for i in range(8):
        if i: a(f"s_movk_i32 s79, {i*4096}")
        a(f"buffer_load_dword v{8+i}, v22, s[44:47], {'s79' if i else '0'} offen sc1")
    a("s_waitcnt vmcnt(0)")
    poll_check("B", range(8, 16), 97)
    stamp(11)
    for i in range(8):
        a(f"v_dot2_f32_bf16 v{X+24}, v{8+i}, s71, v{X+24}"); a(f"v_dot2_f32_bf16 v{X+25}, v{8+i}, s72, v{X+25}")
    a(f"v_cvt_pk_bf16_f32 v8, v{X+24}, v{X+25}")
    a("v_dot2_f32_bf16 v9, v8, s68, 0"); a("v_dot2_f32_bf16 v10, v8, v8, 0")
    a("v_mov_b32_dpp v16, v8 quad_perm:[0,1,2,3] row_mask:0xf bank_mask:0x1")
    for q in (1, 2, 3): a(f"v_mov_b32_dpp v{16+q}, v8 row_shl:{4*q} row_mask:0xf bank_mask:0x1")
    for r_ in (9, 10): a(f"v_add_f32_dpp v{r_}, v{r_}, v{r_} quad_perm:[1,0,3,2] {DPPF}")
    a(f"v_smfmac_f32_16x16x64_bf16 v[24:27], v[16:19], {vr(X+8, 8)}, v1")
    for r_ in (9, 10): a(f"v_add_f32_dpp v{r_}, v{r_}, v{r_} row_ror:4 {DPPF}")
    a(f"v_smfmac_f32_16x16x64_bf16 v[28:31], v[16:19], {vr(X+16, 8)}, v1")
    for r_ in (9, 10): a(f"v_add_f32_dpp v{r_}, v{r_}, v{r_} row_ror:8 {DPPF}")
    a("s_cmp_eq_u32 s3, 0")
    a("v_permlane32_swap_b32 v9, v10")
    a("v_add_f32 v11, v9, v10"); a("v_add_f32 v9, v9, v10")
    a("v_add_f32 v12, v24, v25"); a("v_add_f32 v13, v26, v27")
    a("v_permlane16_swap_b32 v9, v11")
    a("v_add_f32 v14, v28, v29"); a("v_add_f32 v15, v30, v31")
    a("v_add_f32 v9, v9, v11")
    a("s_mov_b32 exec_hi, 0")
    a("ds_write_b128 v7, v[12:15]")
    a("s_mov_b32 exec_lo, 5"); a("s_mov_b32 exec_hi, 5")
    a("ds_write_b32 v23, v9")
    a("s_mov_b64 exec, -1")
    a("s_waitcnt lgkmcnt(0)")
    a("s_barrier")
    stamp(12)
    a("s_cbranch_scc0 L_H_done")
    for i in range(4): a(f"ds_read_b128 {vr(X+4*i, 4)}, v{X+27} offset:{16*i}")
    for w in range(8): a(f"ds_read2st64_b32 {vr(8+2*w, 2)}, v{X+26} offset0:{2*w} offset1:{2*w+1}")
    a("s_waitcnt lgkmcnt(0)" if dbg else "s_waitcnt lgkmcnt(8)")
    for st_ in (8, 4, 2):
        for i in range(0, st_, 2): a(f"v_pk_add_f32 {vr(X+i,2)}, {vr(X+i,2)}, {vr(X+i+st_,2)}")
    a(f"v_mul_f32 v{X}, {f2h(1/512)}, v{X}"); a(f"v_mul_f32 v{X+1}, {f2h(1/512)}, v{X+1}")
    a(f"v_fma_f32 v{X+1}, -v{X}, v{X}, v{X+1}"); a(f"v_max_f32 v{X+1}, 0, v{X+1}"); a(f"v_add_f32 v{X+1}, {f2h(1e-5)}, v{X+1}"); a(f"v_rsq_f32 v{X+1}, v{X+1}")
    a("s_waitcnt lgkmcnt(0)")
    for st_ in (8, 4, 2):
        for i in range(0, st_, 2): a(f"v_pk_add_f32 {vr(8+i,2)}, {vr(8+i,2)}, {vr(8+i+st_,2)}")
    a(f"v_fma_f32 v8, -v{X}, v9, v8"); a(f"v_mul_f32 v9, v8, v{X+1}"); a(f"v_mul_f32 v8, v8, v{X+1}")
    c0 = -2 * math.log2(math.e) * math.sqrt(2 / math.pi); c1 = c0 * 0.044715
    a(f"v_mov_b32 v11, {f2h(c0)}"); a("v_mul_f32 v10, v8, v8")
    a("v_permlane32_swap_b32 v8, v9")
    a(f"v_fmac_f32 v11, {f2h(c1)}, v10"); a("v_mul_f32 v11, v11, v8"); a("v_exp_f32 v11, v11")
    a("v_mul_f32 v8, v8, v9"); a("v_add_f32 v11, 1.0, v11"); a("v_rcp_f32 v11, v11"); a("v_mul_f32 v8, v8, v11")
    pack_store_prep(8, 12)
    a("s_mov_b64 exec, 0x01010101")
    a(f"buffer_store_dwordx4 v[12:15], v{X+28}, s[44:47], s81 offen sc1")
    a("s_mov_b64 exec, -1")
    stamp(13)
    a.label("L_H_done")
    dump()
    a("s_cmp_eq_u32 s7, 0"); a("s_cbranch_scc0 L_end")
    a("s_barrier")
    if dDF: a(f"s_sleep {dDF}")
    a.label("L_D")
    a("v_and_b32 v9, 15, v0"); a("v_lshrrev_b32 v8, 4, v0")
    resF_addr(29, 8, 9)
    a("v_lshrrev_b32 v10, 1, v9"); a("v_lshlrev_b32 v10, 7, v10"); a("v_lshl_add_u32 v10, v8, 5, v10")
    a("v_and_b32 v11, 1, v9"); a("v_lshl_add_u32 v10, v11, 4, v10"); a("s_lshl_b32 s78, s73, 10"); a("v_add_u32 v30, s78, v10")
    a("v_mov_b32 v31, v29")
    zero_s1(); s1_prep()
    a.label("L_poll_D")
    a("buffer_load_dwordx4 v[8:11], v30, s[64:67], 0 offen sc1")
    a("buffer_load_dword v3, v31, s[64:67], 0 offen sc1")
    a("s_waitcnt vmcnt(0)")
    poll_check("D", [8, 9, 10, 11, 3], 99, tmp=12)
    a(f"s_mov_b32 s7, {LS}")
    if dbg: a("s_mov_b32 s64, s94"); a("s_mov_b32 s65, s95")
    else: a("s_mov_b32 s64, s26"); a("s_mov_b32 s65, s27")
    a("s_branch L_S1")
    a.label("L_notF")
    a("s_cmp_eq_u32 s6, 2"); a("s_cbranch_scc1 L_G")
    dump()
    a("s_cmp_eq_u32 s7, 0"); a("s_cbranch_scc0 L_end")
    a("s_barrier")
    if dDN: a(f"s_sleep {dDN}")
    a("s_branch L_D")
    a.label("L_G")
    a("v_and_b32 v20, 15, v0"); a("v_lshrrev_b32 v21, 4, v0")
    a("v_lshlrev_b32 v22, 6, v21"); a("v_lshl_add_u32 v22, v20, 4, v22")
    a("s_mul_i32 s78, s74, 88"); a("s_mul_i32 s79, s3, 12"); a("s_add_u32 s78, s78, s79"); a("s_lshl_b32 s78, s78, 6"); a("s_add_u32 s78, s78, s7"); a(f"s_add_u32 s78, s78, {HC}")
    a("s_cmp_eq_u32 s3, 7")
    a("s_mov_b32 s82, 0x000f000f"); a("s_cselect_b32 s83, 0, s82")
    a("s_lshl_b32 s80, s3, 7"); a(f"s_add_u32 s80, s80, {S5B}"); a("v_lshl_add_u32 v7, v0, 3, s80")
    a("v_and_b32 v23, 1, v21"); a("v_lshlrev_b32 v28, 2, v23"); a("v_lshl_add_u32 v28, v20, 3, v28"); a(f"v_add_u32 v28, {S5B}, v28")
    a("v_lshrrev_b32 v29, 3, v20"); a("v_lshlrev_b32 v29, 4, v29"); a("v_lshl_add_u32 v29, v23, 10, v29")
    a("s_lshl_b32 s81, s74, 11"); a("s_lshl_b32 s79, s75, 5"); a("s_add_u32 s81, s81, s79")
    a("s_cmp_eq_u32 s3, 0"); a("s_cbranch_scc0 L_G_res_done")
    a("v_lshrrev_b32 v30, 1, v20"); a("v_lshlrev_b32 v30, 2, v30"); a("v_lshl_add_u32 v30, v23, 5, v30")
    a("s_lshl_b32 s79, s75, 7"); a("s_lshl_b32 s80, s74, 6"); a("s_add_u32 s79, s79, s80"); a("s_add_u32 s79, s79, s7"); a(f"s_add_u32 s79, s79, {YB}")
    a("v_add_u32 v30, s79, v30")
    a("v_and_b32 v31, 1, v20"); a("v_lshlrev_b32 v31, 4, v31"); a("v_lshlrev_b32 v31, v31, s71")
    if ackB: a("s_waitcnt vmcnt(0)")
    if dB: a(f"s_sleep {dB}")
    a.label("L_poll_R")
    for i in range(8):
        if i: a(f"s_movk_i32 s79, {i*4096}")
        a(f"buffer_load_dword v{8+i}, v30, s[44:47], {'s79' if i else '0'} offen sc1")
    a("s_waitcnt vmcnt(0)")
    poll_check("R", range(8, 16), 97)
    stamp(11)
    for i in range(8): a(f"v_dot2_f32_bf16 v4, v{8+i}, v31, v4")
    a("v_cvt_pk_bf16_f32 v4, v4, v4"); a("v_lshlrev_b32 v4, 16, v4")
    if dC: a(f"s_sleep {dC}")
    a.label("L_G_res_done")
    for i in range(12): a(f"v_mov_b32 v{8+i}, 0")
    for i in range(4): a(f"v_mov_b32 v{24+i}, 0")
    a("s_barrier")
    stamp(12)
    a.label("L_poll_C")
    a("s_mov_b64 exec, s[82:83]")
    a("buffer_load_dwordx4 v[8:11], v22, s[44:47], s78 offen sc1")
    a("s_mov_b32 exec_lo, s83")
    a("s_cbranch_execz L_C_skip")
    a("buffer_load_dwordx4 v[12:15], v22, s[44:47], s78 offen offset:256 sc1")
    a("buffer_load_dwordx4 v[16:19], v22, s[44:47], s78 offen offset:512 sc1")
    a.label("L_C_skip")
    a("s_mov_b64 exec, -1")
    a("s_waitcnt vmcnt(0)")
    poll_check("C", range(8, 20), 98)
    stamp(13)
    for u in range(3): a(f"v_smfmac_f32_16x16x64_bf16 v[24:27], {vr(8+4*u,4)}, {vr(X+8+8*u, 8)}, v1")
    a("s_cmp_eq_u32 s3, 0")
    a("v_add_f32 v8, v24, v25"); a("v_add_f32 v9, v26, v27")
    a("s_mov_b64 exec, 0xffff")
    a("ds_write_b64 v7, v[8:9]")
    a("s_mov_b64 exec, -1")
    a("s_waitcnt lgkmcnt(0)")
    a("s_barrier")
    a("s_cbranch_scc0 L_X_done")
    for i in range(4): a(f"ds_read2_b32 {vr(8+2*i, 2)}, v28 offset0:{64*i} offset1:{64*i+32}")
    a("s_waitcnt lgkmcnt(0)")
    a("v_pk_add_f32 v[8:9], v[8:9], v[10:11]"); a("v_pk_add_f32 v[12:13], v[12:13], v[14:15]"); a("v_pk_add_f32 v[8:9], v[8:9], v[12:13]")
    a("v_add_f32 v8, v8, v9"); a("v_add_f32 v8, v8, v4")
    pack_store_prep(8, 12)
    a("s_mov_b64 exec, 0x01010101")
    a("buffer_store_dwordx4 v[12:15], v29, s[64:67], s81 offen sc1")
    a("s_mov_b64 exec, -1")
    stamp(14)
    a("v_cvt_pk_bf16_f32 v4, v8, v8"); a("v_lshlrev_b32 v4, 16, v4")
    a.label("L_X_done")
    dump()
    a("s_cmp_eq_u32 s7, 0"); a("s_cbranch_scc0 L_end")
    if ackD: a("s_waitcnt vmcnt(0)")
    a("s_barrier")
    if dDG: a(f"s_sleep {dDG}")
    a("s_branch L_D")
    a.label("L_int1")
    a.vm = a.vm[:max(i for i, t in enumerate(a.vm) if t == "V7") + 1]
    a("s_cmp_eq_u32 s3, 0"); a("s_cbranch_scc0 L_nocnt")
    a("v_mov_b32 v6, 0")
    a("global_load_dword v6, v6, s[28:29] sc1", "opt")
    a.label("L_nocnt")
    a("v_and_b32 v9, 15, v0"); a("v_lshrrev_b32 v8, 4, v0")
    a("v_and_b32 v10, 1, v8"); a("v_lshlrev_b32 v10, 3, v10"); a("v_xor_b32 v10, v10, v9"); a("v_lshlrev_b32 v10, 4, v10")
    a("v_lshl_add_u32 v10, v8, 8, v10"); a("v_add_u32 v10, s76, v10")
    a("v_and_b32 v11, 4, v9"); a("v_and_b32 v12, 1, v9"); a("v_lshl_add_u32 v11, v12, 1, v11"); a("v_bfe_u32 v12, v9, 1, 1"); a("v_add_u32 v11, v11, v12")
    a("v_lshrrev_b32 v12, 3, v9"); a("v_lshl_add_u32 v11, v11, 2, v12"); a("v_xor_b32 v12, v8, v9"); a("v_lshlrev_b32 v12, 4, v12")
    a("v_lshl_add_u32 v11, v11, 8, v12"); a("v_add_u32 v11, s76, v11")
    for e in range(8):
        jc = 4 * (e >> 2) + 2 * (e & 1) + ((e >> 1) & 1)
        a(f"v_xor_b32 v12, {jc*16}, v10")
        for hf in range(2):
            n = 8 * hf + e
            a(f"ds_write_b128 v12, {vr(KR + 4*n, 4)} offset:{n*1024}")
        if e % 2 == 1: vload(8 + e // 2)
    a("s_waitcnt lgkmcnt(0)")
    for k in range(4):
        a(f"v_xor_b32 v12, {k*64}, v11")
        for t in range(4):
            a(f"ds_read_b128 {vr(KR + 16*t + 4*k, 4)}, v12 offset:{(t>>1)*8192 + (t&1)*512}")
        vload(12 + k)
    a("v_bfe_u32 v8, v0, 1, 1"); a("v_bfe_u32 v9, v0, 5, 1"); a("v_lshl_add_u32 v8, v9, 1, v8")
    a("v_bfe_u32 v9, v0, 3, 1"); a("v_lshl_add_u32 v8, v9, 2, v8"); a("v_bfe_u32 v9, v0, 2, 1"); a("v_lshl_add_u32 v8, v9, 3, v8")
    a("v_and_b32 v9, 16, v0"); a("v_add_u32 v8, v8, v9")
    a("v_and_b32 v9, 1, v0"); a("v_lshlrev_b32 v9, 4, v9")
    a("v_lshl_add_u32 v10, v8, 10, v9")
    a("v_mad_u32_u24 v11, v8, s77, v9")
    a("s_lshl_b32 s79, s77, 5")
    a("s_waitcnt lgkmcnt(0)")
    for blk, srd in enumerate(("s[60:63]", "s[48:51]", "s[52:55]", "s[56:59]")):
        for n in range(2):
            a(f"s_add_u32 m0, s76, {blk*2048 + n*1024}")
            if blk == 0 and n: a("s_mov_b32 s80, 32768")
            so = "0" if n == 0 else ("s80" if blk == 0 else "s79")
            a(f"buffer_load_dwordx4 v{10 if blk == 0 else 11}, {srd}, {so} offen {wnt} lds", "SW")
    a("s_cmp_eq_u32 s3, 0"); a("s_cbranch_scc0 L_QK")
    a.wait_vm("V7")
    a.label("L_cntchk")
    a("v_readfirstlane_b32 s78, v6"); a("s_cmp_ge_u32 s78, 256"); a("s_cbranch_scc1 L_QK")
    a("s_add_u32 s96, s96, 1"); a(f"s_cmp_gt_u32 s96, {tmo}"); a("s_cbranch_scc1 L_end")
    a("s_sleep 4")
    a("v_mov_b32 v6, 0")
    a("global_load_dword v6, v6, s[28:29] sc1", "opt")
    a("s_waitcnt vmcnt(0)")
    a("s_branch L_cntchk")
    a.label("L_int2")
    a.wait_vm("V7")
    for ep in range(4):
        for r_ in range(4):
            for o in range(2):
                a(f"v_perm_b32 v{VR + 8*(2*r_+o) + ep}, v{VR + 8*(2*ep+1) + 4 + r_}, v{VR + 8*(2*ep) + 4 + r_}, s{69+o}")
    for ep in range(4):
        a.wait_vm(f"V{8 + 2*ep + 1}")
        for r_ in range(4):
            for o in range(2):
                a(f"v_perm_b32 v{VR + 8*(2*r_+o) + 4 + ep}, v{X + 4*(2*ep+1) + r_}, v{X + 4*(2*ep) + r_}, s{69+o}")
    a("s_branch L_PV")
    a.label("L_clear")
    for i in range(4): a(f"v_mov_b32 v{12+i}, -1")
    a("s_lshl_b32 s80, s2, 10")
    a("buffer_store_dwordx4 v[12:15], v5, s[44:47], s80 offen sc1")
    a("v_mov_b32 v16, 0"); a("v_mov_b32 v17, 1")
    a("s_waitcnt vmcnt(0)")
    a("s_mov_b64 exec, 1")
    a("global_atomic_add v16, v17, s[28:29] sc1")
    a("s_mov_b64 exec, -1")
    a("s_branch L_start")
    if pf:
        a.label("L_pref")
        a("s_getpc_b64 s[84:85]")
        a.label("L_pc")
        a(f"s_sub_u32 s84, s84, L_pc-{KN}"); a("s_subb_u32 s85, s85, 0")
        a("v_mov_b32 v12, v5")
        for i in range(8):
            a(f"v_min_u32 v13, L_end-{KN}-12, v12")
            a(f"global_load_dwordx4 {vr(X + 4*i, 4)}, v13, s[84:85]")
            a("v_add_u32 v12, 1024, v12")
        a("s_branch L_start")
    for name, cnt in retries:
        a.label(f"L_retry_{name}")
        a(f"s_add_u32 s{cnt}, s{cnt}, 1"); a(f"s_cmp_gt_u32 s{cnt}, {tmo}"); a("s_cbranch_scc1 L_end")
        if rsleep: a(f"s_sleep {rsleep}")
        a(f"s_branch L_poll_{name}")
    a.label("L_end")
    a("s_endpgm")
    a.raw(f'''.section .rodata,"a"
.p2align 6
.amdhsa_kernel {KN}
  .amdhsa_next_free_vgpr 256
  .amdhsa_next_free_sgpr 102
  .amdhsa_accum_offset 256
  .amdhsa_group_segment_fixed_size 0
  .amdhsa_kernarg_size 96
  .amdhsa_user_sgpr_count 2
  .amdhsa_user_sgpr_kernarg_segment_ptr 1
  .amdhsa_system_sgpr_workgroup_id_x 1
  .amdhsa_float_denorm_mode_32 3
.end_amdhsa_kernel''')
    return a.text()
if __name__ == "__main__":
    out = sys.argv[1]
    kw = {}
    for s in sys.argv[2:]:
        k, v = s.split("=")
        kw[k] = int(v) if v.lstrip("-").isdigit() else v
    open(out, "w").write(gen(**kw))
```

```python
KN = "interleave_layers__sliding_block_cached__geglu_ffn__decode_kernel"
def hdr(A, nthreads, lds=0):
    A(f"; @launch grid=(256,1,1) block=({nthreads},1,1) lds={lds}")
    A('.amdgcn_target "amdgcn-amd-amdhsa--gfx950"')
    A(".text"); A(f".globl {KN}"); A(".p2align 8"); A(f".type {KN},@function"); A(f"{KN}:")
def ftr(A, nv=128, acc=128):
    A("L_end:"); A("s_endpgm")
    A('.section .rodata,"a"'); A(".p2align 6"); A(f".amdhsa_kernel {KN}")
    A(f".amdhsa_next_free_vgpr {nv}"); A(f".amdhsa_accum_offset {acc}")
    A(".amdhsa_next_free_sgpr 96")
    A(".amdhsa_group_segment_fixed_size 0"); A(".amdhsa_kernarg_size 96"); A(".amdhsa_user_sgpr_count 2")
    A(".amdhsa_user_sgpr_kernarg_segment_ptr 1"); A(".amdhsa_system_sgpr_workgroup_id_x 1"); A(".end_amdhsa_kernel")

def gen(pat, sfl="sc1", lfl="sc1", R=8, grp="mod", nw=1, delay=0, cfl="sc1", G=64, pipe=0, gap=2, jit=0, masked=0, shift=0):
    L = []; A = L.append
    hdr(A, 64 * nw, lds=160*1024)
    A("s_cmp_ge_u32 s2, 256"); A("s_cbranch_scc1 L_end")
    A("s_load_dwordx2 s[8:9], s[0:1], 88")
    A("s_load_dwordx2 s[24:25], s[0:1], 80")
    A("v_lshrrev_b32 v1, 6, v0"); A("s_nop 0"); A("v_readfirstlane_b32 s3, v1"); A("v_and_b32 v0, 63, v0")
    lg = {32: 5, 64: 6, 256: 8}[G]
    if G == 256:
        A("s_mov_b32 s4, 0"); A("s_mov_b32 s5, s2")
    elif grp == "mod" and G == 64:
        A("s_and_b32 s4, s2, 7"); A("s_lshr_b32 s4, s4, 1")
        A("s_lshr_b32 s5, s2, 3"); A("s_lshl_b32 s5, s5, 1"); A("s_and_b32 s6, s2, 1"); A("s_add_u32 s5, s5, s6")
    elif grp == "mod" and G == 32:
        A("s_and_b32 s4, s2, 7"); A("s_lshr_b32 s5, s2, 3")
    else:
        A(f"s_lshr_b32 s4, s2, {lg}"); A(f"s_and_b32 s5, s2, {G-1}")
    A("s_waitcnt lgkmcnt(0)")
    A("s_add_u32 s16, s8, 0x100000"); A("s_addc_u32 s17, s9, 0"); A("s_mov_b32 s18, 0x4000000"); A("s_mov_b32 s19, 0x20000")
    def lanes(n):
        if n >= 64: return "-1"
        return hex((1 << n) - 1)
    def setmask(n):
        m = (1 << n) - 1 if n < 64 else (1 << 64) - 1
        A(f"s_mov_b32 s20, {hex(m & 0xffffffff)}"); A(f"s_mov_b32 s21, {hex(m >> 32)}")
    lmask = 64
    if pat.startswith("AG"):
        pb = int(pat[2:])
        gb = G * pb
        A(f"s_mul_i32 s10, s5, {pb}"); A("v_lshlrev_b32 v2, 4, v0"); A("v_add_u32 v2, s10, v2")
        setmask(pb // 16); stoff = [i * 1024 for i in range(max(1, pb // 1024))]
        tot = gb // nw
        A(f"s_mul_i32 s10, s3, {tot}"); A("v_lshlrev_b32 v3, 4, v0"); A("v_add_u32 v3, s10, v3"); ldoff = [i * 1024 for i in range(max(1, tot // 1024))]
        lmask = min(64, tot // 16)
    elif pat.startswith("RS"):
        cb = int(pat[2:]); pb = G * cb; gb = G * pb
        A(f"s_mul_i32 s10, s5, {pb}"); A("v_lshlrev_b32 v2, 4, v0"); A("v_add_u32 v2, s10, v2"); setmask(pb // 16)
        stoff = [i * 1024 for i in range(max(1, pb // 1024))]
        lpp = cb // 16; ppi = 64 // lpp
        sh = lpp.bit_length() - 1
        A(f"v_lshrrev_b32 v3, {sh}, v0"); A(f"s_mov_b32 s10, {pb}"); A("v_mul_lo_u32 v3, v3, s10")
        A(f"v_and_b32 v1, {lpp-1}, v0"); A("v_lshlrev_b32 v1, 4, v1"); A("v_add_u32 v3, v3, v1")
        ninst = max(1, G // ppi // nw)
        A(f"s_mul_i32 s10, s5, {cb}"); A(f"s_mul_i32 s12, s3, {ninst * ppi * pb}"); A("s_add_u32 s10, s10, s12"); A("v_add_u32 v3, s10, v3")
        ldoff = [i * ppi * pb for i in range(ninst)]
        lmask = min(64, G * lpp)
    elif pat in ("PP", "PPS"):
        gb = G * 128
        A("s_lshl_b32 s10, s5, 7"); A("v_mov_b32 v2, s10"); setmask(1); stoff = [0]
        A(f"s_xor_b32 s10, s5, {1 if pat == 'PP' else 2}"); A("s_lshl_b32 s10, s10, 7"); A("v_mov_b32 v3, s10"); ldoff = [0]
        lmask = 1
    rb = gb * (256 // G)
    A(f"s_mul_i32 s7, s4, {gb}")
    if shift:
        A(f"s_xor_b32 s13, s4, {shift}"); A(f"s_mul_i32 s13, s13, {gb}"); A("v_add_u32 v3, s13, v3"); A("v_add_u32 v2, s7, v2"); A("s_mov_b32 s7, 0")
    m = (1 << lmask) - 1
    A(f"s_mov_b32 s22, {hex(m & 0xffffffff)}"); A(f"s_mov_b32 s23, {hex(m >> 32)}")
    for i in range(4): A(f"v_mov_b32 v{4+i}, -1")
    A("s_cmp_eq_u32 s3, 0"); A("s_cbranch_scc0 L_noclear")
    A("s_mov_b64 exec, s[20:21]")
    for r in range(R + 1):
        for o in stoff:
            A(f"s_add_u32 s12, s7, {r * rb + (o & ~4095)}")
            A(f"buffer_store_dwordx4 v[4:7], v2, s[16:19], s12 offen offset:{o & 4095} {cfl}")
    A("s_waitcnt vmcnt(0)")
    A("s_mov_b64 exec, 1")
    A("v_mov_b32 v8, 0"); A("v_mov_b32 v9, 1")
    A("global_atomic_add v8, v9, s[24:25] sc1")
    A("s_mov_b32 s31, 0")
    A("L_bar:")
    A("s_add_u32 s31, s31, 1"); A("s_cmp_gt_u32 s31, 3000"); A("s_cbranch_scc1 L_bardone")
    A("s_sleep 8")
    A("global_load_dword v10, v8, s[24:25] sc1"); A("s_waitcnt vmcnt(0)")
    A("v_readfirstlane_b32 s12, v10"); A("s_cmp_lt_u32 s12, 256"); A("s_cbranch_scc1 L_bar")
    A("L_bardone:")
    A("s_mov_b64 exec, -1")
    A("L_noclear:")
    if nw > 1: A("s_barrier")
    for i in range(4): A(f"v_mov_b32 v{4+i}, 1.0")
    A("s_mov_b32 s11, 0")
    A("s_mov_b32 s30, 0")
    A("L_round:")
    A("s_cmp_eq_u32 s11, 1"); A("s_cbranch_scc0 L_nostamp"); A("s_memrealtime s[40:41]"); A("s_mov_b32 s30, 0"); A("L_nostamp:")
    if jit:
        A("s_mul_i32 s13, s2, 37"); A("s_lshr_b32 s13, s13, 3"); A("s_mul_i32 s14, s11, 11"); A("s_add_u32 s13, s13, s14"); A(f"s_and_b32 s13, s13, {jit-1}")
        A("L_jit:"); A("s_cmp_eq_u32 s13, 0"); A("s_cbranch_scc1 L_jitd"); A("s_sleep 1"); A("s_sub_u32 s13, s13, 1"); A("s_branch L_jit"); A("L_jitd:")
    A("s_cmp_eq_u32 s3, 0"); A("s_cbranch_scc0 L_nostore")
    A("s_mov_b64 exec, s[20:21]")
    for o in stoff:
        A(f"s_add_u32 s12, s7, {o & ~4095}")
        A(f"buffer_store_dwordx4 v[4:7], v2, s[16:19], s12 offen offset:{o & 4095} {sfl}")
    A("L_nostore:")
    A("s_mov_b64 exec, s[22:23]")
    if delay == "w": A("s_waitcnt vmcnt(0)")
    elif delay: A(f"s_sleep {delay}")
    if delay == "w" and nw > 1: A("s_barrier")
    A("s_mov_b32 s31, 0")
    nl = len(ldoff)
    def issue(k):
        for i, o in enumerate(ldoff):
            A(f"s_add_u32 s12, s7, {o & ~4095}")
            b = 12 + 4 * (k * nl + i)
            A(f"buffer_load_dwordx4 v[{b}:{b+3}], v3, s[16:19], s12 offen offset:{o & 4095} {lfl}")
    def check(k, later):
        for i in range(nl):
            A(f"s_waitcnt vmcnt({nl-1-i+later})")
            b = 12 + 4 * (k * nl + i)
            if i == 0: A(f"v_max3_u32 v1, v{b}, v{b+1}, v{b+2}"); A(f"v_max_u32 v1, v1, v{b+3}")
            else: A(f"v_max3_u32 v1, v1, v{b}, v{b+1}"); A(f"v_max3_u32 v1, v1, v{b+2}, v{b+3}")
        A("v_cmp_eq_u32 vcc, -1, v1")
    if not pipe:
        A("L_poll:")
        A("s_add_u32 s30, s30, 1")
        A("s_add_u32 s31, s31, 1"); A("s_cmp_gt_u32 s31, 3000"); A("s_cbranch_scc1 L_done")
        issue(0); check(0, 0)
        if masked: A("s_mov_b64 exec, vcc")
        A("s_cbranch_vccnz L_poll")
    else:
        for k in range(pipe - 1):
            issue(k); A(f"s_sleep {gap}")
        A("L_poll:")
        A("s_add_u32 s31, s31, 1"); A("s_cmp_gt_u32 s31, 3000"); A("s_cbranch_scc1 L_done")
        for k in range(pipe):
            A("s_add_u32 s30, s30, 1")
            issue((k + pipe - 1) % pipe); check(k, (pipe - 1) * nl)
            A("s_cbranch_vccz L_ok")
        A("s_branch L_poll")
        A("L_ok:")
    A("s_mov_b64 exec, -1")
    if nw > 1: A("s_barrier")
    A(f"s_add_u32 s7, s7, {rb}")
    A("s_add_u32 s11, s11, 1"); A(f"s_cmp_le_u32 s11, {R}"); A("s_cbranch_scc1 L_round")
    A("L_done:")
    A("s_mov_b64 exec, -1")
    A("s_memrealtime s[42:43]")
    A("s_waitcnt lgkmcnt(0)")
    A("s_cmp_eq_u32 s3, 0"); A("s_cbranch_scc0 L_end")
    A("s_lshl_b32 s12, s2, 4")
    A("v_mov_b32 v4, s40"); A("v_mov_b32 v5, s42"); A("v_mov_b32 v6, s30"); A("v_mov_b32 v7, s11")
    A("v_mov_b32 v1, s12")
    A("v_cmp_eq_u32 vcc, 0, v0"); A("s_and_saveexec_b64 s[30:31], vcc")
    A("global_store_dwordx4 v1, v[4:7], s[8:9]")
    A("s_waitcnt vmcnt(0)")
    ftr(A, 256, 256)
    return "\n".join(L) + "\n"
if __name__ == "__main__":
    V = {}
    for nm, base in (("A", dict(pat="AG256", G=32, nw=8)), ("As", dict(pat="AG256", G=32, nw=8, shift=1)), ("Ds", dict(pat="AG16", G=64, shift=1)), ("D32s", dict(pat="AG32", G=64, shift=1))):
        for jit in (0, 8):
            for d in (0, 4, 8, 12):
                V[f"{nm}_j{jit}_d{d}"] = dict(base, jit=jit, delay=d)
            V[f"{nm}_j{jit}_d0m"] = dict(base, jit=jit, masked=1)
            V[f"{nm}_j{jit}_p2"] = dict(base, jit=jit, pipe=2, gap=6)
            V[f"{nm}_j{jit}_p4"] = dict(base, jit=jit, pipe=4, gap=3)
            V[f"{nm}_j{jit}_p4d4"] = dict(base, jit=jit, pipe=4, gap=3, delay=4)
    for k, v in V.items():
        s = gen(**v)
        open(f"mb2_{k}.s", "w").write(s)
    print(" ".join(f"mb2_{k}.s" for k in V))
```

```python
from gen_mb2 import hdr, ftr
def gen(threads, lds, nv, acc, grid=256):
    L = []; A = L.append
    hdr(A, threads, lds=lds)
    L[0] = f"; @launch grid=({grid},1,1) block=({threads},1,1) lds={lds}"
    A("s_memrealtime s[4:5]"); A("s_waitcnt lgkmcnt(0)"); A("L_s:"); A("s_memrealtime s[6:7]"); A("s_waitcnt lgkmcnt(0)"); A("s_sub_u32 s6, s6, s4"); A("s_cmp_lt_u32 s6, 1000"); A("s_cbranch_scc1 L_s")
    ftr(A, nv, acc)
    return "\n".join(L) + "\n"
V = {"small": (64, 0, 8, 8), "t256": (256, 0, 8, 8), "lds": (256, 143104, 8, 8), "vgpr": (256, 0, 512, 256), "both": (256, 143104, 512, 256), "lds64": (256, 65536, 512, 256), "g8": (64, 0, 8, 8, 8)}
for k, v in V.items(): open(f"mb12_{k}.s", "w").write(gen(*v))
print(" ".join(f"mb12_{k}.s" for k in V))
```
